```python
import torch

def _softmax(x, axis=-1):
    return torch.softmax(x, dim=axis)
def _gelu(x):
    return torch.nn.functional.gelu(x, approximate="tanh")
def _silu(x):
    return torch.nn.functional.silu(x)
def _sigmoid(x):
    return torch.sigmoid(x)
def _layernorm(x, axis=-1, eps=1e-5):
    m = x.mean(dim=axis, keepdim=True)
    v = x.var(dim=axis, keepdim=True, unbiased=False)
    return (x - m) / torch.sqrt(v + eps)
def _scatter_add(tgt, idx, src, axis=0):
    return tgt.clone().index_add_(axis, idx, src)
def _segment_sum(src, seg, n):
    out = torch.zeros((n,) + src.shape[1:], dtype=src.dtype)
    return out.index_add_(0, seg, src)
def _pad(x, pw):
    flat = tuple(v for pair in reversed(pw) for v in pair)
    return torch.nn.functional.pad(x, flat)

kernel_name = 'recurrent_scan__mha_block_cached__dense_activation_silu__prompt'

def setup_inputs():

    _w = (lambda a: (lambda t: t.to(torch.bfloat16) if t.is_floating_point() else t)(torch.as_tensor(a)))
    def _A_setup():
        B, Sq, D = 1, 2048, 640
        H, Sk, Dh = 32, 2048, 128
        return {
            "x": _w((lambda *s: torch.randn(*s, dtype=torch.bfloat16) * 0.05)(B, Sq, D)),
            "k_cache": _w((lambda *s: torch.randn(*s, dtype=torch.bfloat16) * 3.2)(B, H, Sk, Dh)),
            "v_cache": _w((lambda *s: torch.randn(*s, dtype=torch.bfloat16) * 3.2)(B, H, Sk, Dh)),
            "wq": _w((lambda *s: torch.randn(*s, dtype=torch.bfloat16) * 3.2)(D, H * Dh) * (D ** -0.5)),
            "wo": _w((lambda *s: torch.randn(*s, dtype=torch.bfloat16) * 3.2)(H * Dh, D) * ((H * Dh) ** -0.5)),
        }
    _A_in = _A_setup()

    def _B_setup():
        B, S, D, F = 1, 2048, 640, 1728
        return {
            "x": _w((lambda *s: torch.randn(*s, dtype=torch.bfloat16) * 0.05)(B, S, D)),
            "w1": _w((lambda *s: torch.randn(*s, dtype=torch.bfloat16) * 3.2)(D, F) * (D ** -0.5)),
            "w2": _w((lambda *s: torch.randn(*s, dtype=torch.bfloat16) * 0.4)(F, D) * (F ** -0.5)),
        }
    _B_in = _B_setup()

    return {
        "A_x": _A_in["x"],
        "A_k_cache": _A_in["k_cache"],
        "A_v_cache": _A_in["v_cache"],
        "A_wq": _A_in["wq"],
        "A_wo": _A_in["wo"],
        "B_x": _B_in["x"],
        "B_w1": _B_in["w1"],
        "B_w2": _B_in["w2"],
    }

def reference(A_x, A_k_cache, A_v_cache, A_wq, A_wo, B_x, B_w1, B_w2):
    def _A_ref(x, k_cache, v_cache, wq, wo):
        B, Sq, D = x.shape
        H, Dh = 32, 128
        q = (lambda x, *d: x.permute(*d))((x @ wq).reshape(B, Sq, H, Dh), 0, 2, 1, 3)
        scores = torch.einsum("bhqd,bhkd->bhqk", q, k_cache) * (Dh ** -0.5)
        p = _softmax(scores, axis=-1)
        o = torch.einsum("bhqk,bhkd->bhqd", p, v_cache)
        return (lambda x, *d: x.permute(*d))(o, 0, 2, 1, 3).reshape(B, Sq, H * Dh) @ wo

    def _B_ref(x, w1, w2):
        h = torch.einsum("bsd,df->bsf", x, w1)
        h = _silu(h)
        out = torch.einsum("bsf,fd->bsd", h, w2)
        return out

    x = A_x
    xn = _layernorm(x, axis=-1)
    s = _A_ref(xn, A_k_cache, A_v_cache, A_wq, A_wo)
    g = _silu(_B_ref(xn, B_w1, B_w2))
    return x + s * g
```

```python
import re
RE_REG = re.compile(r'^(-|abs\()?([vas])(?:\[(\d+):(\d+)\]|(\d+))\)?$')
def regs(op):
    op = op.strip()
    if op == 'vcc': return {('s','vcc')}
    if op == 'm0': return {('s','m0')}
    if op == 'exec': return {('s','exec')}
    m = RE_REG.match(op)
    if not m: return set()
    k = m.group(2)
    if m.group(3) is not None:
        return {(k,i) for i in range(int(m.group(3)), int(m.group(4))+1)}
    return {(k,int(m.group(5)))}
TRANS = ('v_exp_f32','v_log_f32','v_rcp_f32','v_rsq_f32','v_sqrt_f32')
class I:
    __slots__=('t','op','kind','d','u','passes','cu')
    def __init__(s, t):
        s.t = t.strip()
        tt = s.t.split(';')[0].strip()
        s.d=set(); s.u=set(); s.passes=0; s.cu=set()
        if tt.endswith(':') or tt.startswith('.') or tt=='':
            s.op='label'; s.kind='label'; return
        p = tt.split(None,1)
        s.op = p[0]
        ops = [o.strip() for o in p[1].split(',')] if len(p)>1 else []
        ops = [o.split()[0] if o and not o.startswith('hwreg') else o for o in ops]
        op = s.op
        R = [regs(o) for o in ops]
        def U(lst):
            r=set()
            for x in lst: r|=x
            return r
        if op.startswith('v_mfma'):
            s.kind='mfma'; s.d=R[0]; s.u=U(R[1:]); s.cu=R[3]
            s.passes = 8 if '32x32' in op else 4
        elif op.startswith('ds_'):
            s.kind='ds'
            if op.startswith('ds_read') or 'permute' in op or 'swizzle' in op: s.d=R[0]; s.u=U(R[1:])
            else: s.u=U(R)
        elif op.startswith('buffer_') or op.startswith('global_'):
            s.kind='vmem'
            if 'load' in op and not tt.endswith('lds') and ' lds' not in tt: s.d=R[0]; s.u=U(R[1:])
            else:
                s.u=U(R)
                if ' lds' in tt: s.u|={('s','m0')}
        elif op.startswith('s_waitcnt'): s.kind='wait'
        elif op.startswith('s_nop'): s.kind='nop'
        elif op.startswith('s_load'): s.kind='smem'; s.d=R[0]; s.u=U(R[1:])
        elif op.startswith('s_'):
            s.kind='salu'
            if op.startswith('s_cmp') or op.startswith('s_cbranch') or op in('s_branch','s_barrier','s_endpgm','s_setprio'):
                s.u=U(R)
            else:
                s.d=R[0] if R else set(); s.u=U(R[1:])
        elif op.startswith('v_'):
            s.kind='trans' if op.replace('_e32','').replace('_e64','') in TRANS else 'valu'
            s.d=set(R[0]); s.u=U(R[1:])
            if op.startswith('v_cmp'):
                pass
            if op.startswith('v_fmac') or op.startswith('v_dot2c') or op.startswith('v_permlane'): s.u|=R[0]
            if op.startswith('v_permlane'): s.d|=R[1]
            if '_dpp' in op: s.u|=R[0]
            if op.startswith('v_add_co') or op.startswith('v_addc_co'): s.d|=R[1];
            if op.startswith('v_cndmask') and len(ops)==3: s.u|={('s','vcc')}
        else:
            raise Exception('unknown '+t)
    def states(s):
        if s.kind=='label': return 0
        if s.kind=='nop': return int(s.t.split()[1],0)+1
        return 1

def parse(text):
    return [I(l) for l in text.strip('\n').split('\n') if l.strip()]

def auto_lgkm(ins, entry=None, eager=20):
    q = [[set(a),b] for a,b in (entry or [])]; out=[]
    for i in ins:
        for e in q: e[1]+=1
        if i.kind=='wait' and 'lgkmcnt' in i.t:
            n=int(re.search(r'lgkmcnt\((\d+)\)',i.t).group(1))
            while len(q)>n: q.pop(0)
            out.append(i); continue
        if i.kind=='label' or i.kind=='nop':
            out.append(i); continue
        touch = i.u | i.d
        need=-1
        for k,(dst,age) in enumerate(q):
            if dst & touch: need=k
        if need>=0:
            while need+1<len(q) and q[need+1][1]>=eager: need+=1
        if i.kind=='smem':
            assert not q, 'smem with ds outstanding'
        if need>=0:
            n=len(q)-need-1
            n=min(n,15)
            out.append(I('s_waitcnt lgkmcnt(%d)'%n))
            while len(q)>n: q.pop(0)
        out.append(i)
        if i.kind=='ds':
            q.append([set(i.d),0])
            pass
    return out,[(sorted(a),b) for a,b in q]

def hazards(ins, fix=True, name='', verbose=True):
    out=[]; hist=[]
    nfix=0
    for i in ins:
        if i.kind=='label':
            out.append(i); continue
        need=0
        dist=0
        for p in reversed(out):
            if p.kind=='label': continue
            if dist>=20: break
            req=0
            isv = i.kind in('valu','trans')
            if p.kind=='mfma':
                big = p.passes==8
                if i.kind=='mfma':
                    ab = i.u - i.cu
                    if p.d & ab: req=max(req,12 if big else 8)
                    if (p.d & i.cu) and p.d!=i.cu: req=max(req,10 if big else 6)
                    if (p.d & i.cu) and p.d==i.cu and p.passes!=i.passes: req=max(req,10 if big else 6)
                elif isv or i.kind in('ds','vmem'):
                    if p.d & (i.u|i.d): req=max(req,12 if big else 8)
                    if isv and (p.cu & i.d): req=max(req,7 if big else 3)
            elif p.kind in('valu','trans'):
                vd={r for r in p.d if r[0] in 'va'}
                sd={r for r in p.d if r[0]=='s'}
                if i.kind=='mfma' and vd & i.u: req=max(req,2)
                if p.kind=='trans' and isv and vd & i.u: req=max(req,1)
                if isv and ('permlane' in i.op or '_dpp' in i.op) and vd & i.u: req=max(req,2)
                if isv and ('readlane' in i.op or 'readfirstlane' in i.op) and vd & i.u: req=max(req,1)
                if i.kind=='vmem' and sd & i.u: req=max(req,5)
                if isv and sd & i.u: req=max(req,2)
                if i.kind=='salu' and sd & i.u: req=max(req,4)
            elif p.kind=='vmem':
                if 'store' in p.op and ('x4' in p.op or 'x3' in p.op) and (i.d & p.u) and i.kind!='salu': req=max(req,2)
            elif p.kind=='salu':
                if ('s','m0') in p.d and i.kind=='vmem' and ('s','m0') in i.u: req=max(req,1)
            need=max(need,req-dist)
            dist+=p.states()
        if need>0:
            nfix+=1
            if not fix:
                print('HAZARD',name,'need',need,'before',i.t)
            else:
                while need>0:
                    k=min(need,16); out.append(I('s_nop %d'%(k-1))); need-=k
        out.append(i)
    return out,nfix

def text(ins):
    return '\n'.join(('' if i.kind=='label' else '    ')+i.t for i in ins)+'\n'
```

```python
from asmlib import *
XN_OFF=0; WT_OFF=0x280000; ACT_OFF=0xA00000; WS_SIZE=268435456
TBS=182*1024

def srd(s, base, off, size):
    r=''
    if off:
        r+=f's_add_u32 s{s}, s{base}, {hex(off)}\ns_addc_u32 s{s+1}, s{base+1}, 0\n'
    else:
        r+=f's_mov_b32 s{s}, s{base}\ns_mov_b32 s{s+1}, s{base+1}\n'
    r+=f's_mov_b32 s{s+2}, {hex(size)}\ns_mov_b32 s{s+3}, 0x00020000\n'
    return r

def finish(t, name=''):
    ins=parse(t)
    ins,_=auto_lgkm(ins)
    ins,n=hazards(ins,fix=True,name=name)
    return text(ins)

def k0():
    t='''
s_load_dwordx2 s[4:5], s[0:1], 0
s_load_dwordx2 s[6:7], s[0:1], 32
s_load_dwordx2 s[8:9], s[0:1], 56
s_load_dwordx2 s[10:11], s[0:1], 80
v_lshrrev_b32 v1, 6, v0
v_and_b32 v0, 63, v0
s_nop 0
v_readfirstlane_b32 s3, v1
s_cmp_ge_u32 s2, 492
s_cbranch_scc1 K0_END
s_waitcnt lgkmcnt(0)
s_cmp_ge_u32 s2, 128
s_cbranch_scc1 K0_RELAY
'''
    t+=srd(12,4,0,2621440)+srd(16,10,XN_OFF,2621440)
    t+='''
s_lshl_b32 s20, s2, 4
s_lshl_b32 s21, s3, 2
s_add_u32 s20, s20, s21
v_lshrrev_b32 v1, 4, v0
v_add_u32 v1, s20, v1
v_and_b32 v2, 15, v0
s_movk_i32 s22, 1280
v_mul_lo_u32 v3, v1, s22
v_lshl_add_u32 v3, v2, 4, v3
'''
    for n in range(5):
        t+=f'buffer_load_dwordx4 v[{8+4*n}:{11+4*n}], v3, s[12:15], 0 offen offset:{256*n}\n'
    t+='''
v_lshrrev_b32 v4, 5, v1
s_mov_b32 s22, 40960
v_mul_lo_u32 v4, v4, s22
v_lshl_add_u32 v4, v2, 9, v4
v_and_b32 v5, 31, v1
v_lshl_add_u32 v4, v5, 4, v4
'''
    for n in range(5):
        t+=f's_waitcnt vmcnt({4-n})\n'
        for k in range(4):
            r=8+4*n+k; o=32+8*n+2*k
            t+=f'v_lshlrev_b32 v{o}, 16, v{r}\nv_and_b32 v{o+1}, 0xffff0000, v{r}\n'
    def reduce16(v):
        s=''
        for ror in (8,4,2,1):
            s+=f's_nop 1\nv_add_f32_dpp v{v}, v{v}, v{v} row_ror:{ror} row_mask:0xf bank_mask:0xf\n'
        return s
    t+='v_add_f32 v6, v32, v33\nv_add_f32 v7, v34, v35\n'
    for k in range(36,72,2):
        t+=f'v_add_f32 v6, v6, v{k}\nv_add_f32 v7, v7, v{k+1}\n'
    t+='v_add_f32 v6, v6, v7\n'+reduce16(6)
    t+='v_mul_f32 v6, 0x3acccccd, v6\n'
    for k in range(32,72): t+=f'v_sub_f32 v{k}, v{k}, v6\n'
    t+='v_mul_f32 v7, v32, v32\nv_mul_f32 v6, v33, v33\n'
    for k in range(34,72,2):
        t+=f'v_fmac_f32 v7, v{k}, v{k}\nv_fmac_f32 v6, v{k+1}, v{k+1}\n'
    t+='v_add_f32 v7, v6, v7\n'+reduce16(7)
    t+='v_mov_b32 v6, 0x3727c5ac\nv_fmac_f32 v6, 0x3acccccd, v7\nv_rsq_f32 v6, v6\ns_nop 0\n'
    for k in range(32,72): t+=f'v_mul_f32 v{k}, v{k}, v6\n'
    for n in range(5):
        for k in range(4):
            o=32+8*n+2*k
            t+=f'v_cvt_pk_bf16_f32 v{8+4*n+k}, v{o}, v{o+1}\n'
        t+=f's_mov_b32 s22, {8192*n}\nbuffer_store_dwordx4 v[{8+4*n}:{11+4*n}], v4, s[16:19], s22 offen\n'
    t+='s_endpgm\nK0_RELAY:\n'
    t+='''
s_sub_u32 s20, s2, 128
s_lshl_b32 s20, s20, 2
s_add_u32 s20, s20, s3
s_lshr_b32 s21, s20, 3
s_and_b32 s22, s20, 7
s_cmp_lt_u32 s21, 128
s_cselect_b32 s12, s6, s8
s_cselect_b32 s13, s7, s9
s_mov_b32 s14, 0x21c000
s_cselect_b32 s14, 0x500000, s14
s_cselect_b32 s23, 0, 128
s_mov_b32 s15, 0x00020000
s_sub_u32 s23, s21, s23
s_mul_i32 s23, s23, 40960
s_mul_i32 s24, s22, 160
s_add_u32 s23, s23, s24
'''
    t+=srd(16,10,WT_OFF,8*182*5120)
    t+='''
s_mul_i32 s24, s22, 182
s_add_u32 s24, s24, s21
s_mul_i32 s24, s24, 5120
s_mul_i32 s25, s3, 5120
s_movk_i32 s26, 6554
s_movk_i32 s27, 1120
'''
    for n in range(5):
        t+=f'''v_add_u32 v1, {64*n}, v0
v_mul_lo_u32 v2, v1, s26
v_lshrrev_b32 v2, 16, v2
v_mul_lo_u32 v2, v2, s27
v_lshl_add_u32 v2, v1, 4, v2
buffer_load_dwordx4 v[{8+4*n}:{11+4*n}], v2, s[12:15], s23 offen
'''
    t+='''
v_lshl_add_u32 v3, v0, 4, s25
v_lshrrev_b32 v4, 4, v0
v_and_b32 v5, 15, v0
v_lshrrev_b32 v6, 2, v5
v_lshl_add_u32 v6, v4, 3, v6
s_movk_i32 s26, 160
v_mul_lo_u32 v6, v6, s26
v_and_b32 v5, 3, v5
v_lshl_add_u32 v6, v5, 3, v6
v_add_u32 v6, s25, v6
v_lshlrev_b32 v7, 4, v0
'''
    for n in range(5):
        t+=f's_waitcnt vmcnt({4-n})\nds_write_b128 v3, v[{8+4*n}:{11+4*n}] offset:{1024*n}\n'
    t+='s_waitcnt lgkmcnt(0)\n'
    for cb in range(5):
        t+=f'ds_read_b64_tr_b16 v[{32+4*cb}:{33+4*cb}], v6 offset:{32*cb}\n'
        t+=f'ds_read_b64_tr_b16 v[{34+4*cb}:{35+4*cb}], v6 offset:{32*cb+640}\n'
    for cb in range(5):
        t+=f's_add_u32 s25, s24, {1024*cb}\nbuffer_store_dwordx4 v[{32+4*cb}:{35+4*cb}], v7, s[16:19], s25 offen\n'
    t+='K0_END:\ns_endpgm\n'
    return finish(t,'k0')

def k3(D=5):
    NS=46
    t='''
s_load_dwordx2 s[4:5], s[0:1], 0
s_load_dwordx2 s[6:7], s[0:1], 64
s_load_dwordx2 s[10:11], s[0:1], 80
v_lshrrev_b32 v1, 6, v0
v_and_b32 v0, 63, v0
s_nop 0
v_readfirstlane_b32 s3, v1
s_cmp_ge_u32 s2, 256
s_cbranch_scc1 K3_END
s_and_b32 s20, s2, 7
s_lshr_b32 s21, s2, 3
s_lshr_b32 s22, s21, 3
s_lshl_b32 s20, s20, 2
s_add_u32 s20, s20, s22
s_and_b32 s21, s21, 7
s_waitcnt lgkmcnt(0)
'''
    t+=srd(12,10,WT_OFF,WS_SIZE-WT_OFF)+srd(16,10,ACT_OFF,WS_SIZE-ACT_OFF)
    t+=srd(24,4,0,2621440)+srd(28,6,0,2621440)
    t+=f'''
s_mul_i32 s32, s21, {182*5120}
s_mul_i32 s33, s3, 5120
s_add_u32 s32, s32, s33
s_mul_i32 s33, s20, {4*TBS}
s_lshl_b32 s34, s3, 10
s_add_u32 s33, s33, s34
v_lshlrev_b32 v1, 4, v0
v_add_u32 v2, 0x1000, v1
v_add_u32 v3, {TBS}, v1
v_add_u32 v4, {2*TBS}, v1
v_add_u32 v5, {3*TBS}, v1
'''
    t+='''
s_lshl_b32 s34, s20, 6
s_lshl_b32 s35, s3, 4
s_add_u32 s34, s34, s35
v_and_b32 v6, 15, v0
v_add_u32 v6, s34, v6
s_movk_i32 s35, 1280
v_mul_lo_u32 v6, v6, s35
v_lshrrev_b32 v7, 4, v0
v_lshl_add_u32 v6, v7, 3, v6
s_mul_i32 s35, s21, 160
v_add_u32 v6, s35, v6
'''
    SB=16
    def stage(n): return SB+36*(n%D)
    def loads(n):
        b=stage(n); s=''
        for cb in range(4):
            s+=f'buffer_load_dwordx4 v[{b+4*cb}:{b+4*cb+3}], v1, s[12:15], s32 offen offset:{1024*cb}\n'
        s+=f'buffer_load_dwordx4 v[{b+16}:{b+19}], v2, s[12:15], s32 offen\n'
        for tb,vr in enumerate((1,3,4,5)):
            s+=f'buffer_load_dwordx4 v[{b+20+4*tb}:{b+23+4*tb}], v{vr}, s[16:19], s33 offen\n'
        s+='s_add_u32 s32, s32, 20480\ns_add_u32 s33, s33, 4096\n'
        return s
    for n in range(D-1): t+=loads(n)
    XR=SB+36*D
    for n in range(NS):
        if n+D-1<NS: t+=loads(n+D-1)
        rem=min(D-1,NS-1-n)
        t+=f's_waitcnt vmcnt({9*rem})\n'
        if n==NS-1:
            for cb in range(5):
                t+=f'buffer_load_dwordx2 v[{XR+2*cb}:{XR+2*cb+1}], v6, s[24:27], 0 offen offset:{32*cb}\n'
            t+='s_cmp_ge_u32 s3, 2\ns_cbranch_scc1 K3_SKIP\n'
        b=stage(n)
        accb = 0 if n<32 else 80
        first = n in (0,32)
        for tb in range(4):
            for cb in range(5):
                a=accb+(tb*5+cb)*4
                c='0' if first else f'a[{a}:{a+3}]'
                t+=f'v_mfma_f32_16x16x32_bf16 a[{a}:{a+3}], v[{b+4*cb}:{b+4*cb+3}], v[{b+20+4*tb}:{b+23+4*tb}], {c}\n'
    t+='K3_SKIP:\ns_nop 7\n'
    t+='v_lshlrev_b32 v7, 4, v0\n'
    for w in range(4):
        t+=f's_cmp_lg_u32 s3, {w}\ns_cbranch_scc1 K3_W{w}\n'
        for k in range(3):
            tb=(w+1+k)&3
            for part in range(2):
                for cb in range(5):
                    a=part*80+(tb*5+cb)*4
                    off=(tb*3+k)*10240+(part*5+cb)*1024
                    if off<65536: t+=f'ds_write_b128 v7, a[{a}:{a+3}] offset:{off}\n'
                    else: t+=f'ds_write_b128 v8, a[{a}:{a+3}] offset:{off-65536}\n'
            if k==0 and False: pass
        for part in range(2):
            for cb in range(5):
                a=part*80+(w*5+cb)*4
                for r in range(4):
                    t+=f'v_accvgpr_read_b32 v{SB+part*20+cb*4+r}, a{a+r}\n'
        t+=f'K3_W{w}:\n'
    t=t.replace('v_lshlrev_b32 v7, 4, v0\ns_cmp_lg_u32 s3, 0','v_lshlrev_b32 v7, 4, v0\nv_add_u32 v8, 0x10000, v7\ns_cmp_lg_u32 s3, 0')
    t+='s_waitcnt lgkmcnt(0)\ns_barrier\n'
    t+='s_mul_i32 s34, s3, 30720\nv_add_u32 v7, s34, v7\n'
    RB=SB+40
    for k in range(3):
        for q in range(10):
            t+=f'ds_read_b128 v[{RB+40*k+4*q}:{RB+40*k+4*q+3}], v7 offset:{k*10240+q*1024}\n'
    for k in range(3):
        for q in range(40):
            t+=f'v_add_f32 v{SB+q}, v{SB+q}, v{RB+40*k+q}\n'
    t+='s_waitcnt vmcnt(0)\n'
    G=SB+20
    for q in range(20):
        t+=f'v_mul_f32 v{RB+q}, 0xbfb8aa3b, v{G+q}\n'
    for q in range(20): t+=f'v_exp_f32 v{RB+q}, v{RB+q}\n'
    for q in range(20): t+=f'v_add_f32 v{RB+q}, 1.0, v{RB+q}\n'
    for q in range(20): t+=f'v_rcp_f32 v{RB+q}, v{RB+q}\n'
    for q in range(20): t+=f'v_mul_f32 v{G+q}, v{G+q}, v{RB+q}\n'
    for cb in range(5):
        x0=XR+2*cb
        for r in range(4):
            src=x0+r//2
            if r%2==0: t+=f'v_lshlrev_b32 v{RB+cb*4+r}, 16, v{src}\n'
            else: t+=f'v_and_b32 v{RB+cb*4+r}, 0xffff0000, v{src}\n'
            t+=f'v_fmac_f32 v{RB+cb*4+r}, v{SB+cb*4+r}, v{G+cb*4+r}\n'
        t+=f'v_cvt_pk_bf16_f32 v{x0}, v{RB+cb*4}, v{RB+cb*4+1}\nv_cvt_pk_bf16_f32 v{x0+1}, v{RB+cb*4+2}, v{RB+cb*4+3}\n'
        t+=f'buffer_store_dwordx2 v[{x0}:{x0+1}], v6, s[28:31], 0 offen offset:{32*cb}\n'
    t+='K3_END:\ns_endpgm\n'
    assert XR+10<=256 and RB+120<=256
    return finish(t,'k3')
```

```python
from asmlib import *
from k0k3 import srd, finish, XN_OFF, WT_OFF, ACT_OFF, WS_SIZE, TBS
KA=8; VA=16; KD=20; VD=24; L=25
S=[32,64]; NEG=96; P=[128,144]; Q=160
WA=224; W1A=228; WQD=230; W1D=231; XD=232; AD=234
KF=128; VF=160
def mf(d,a,b,c): return f'v_mfma_f32_32x32x16_bf16 {d}, {a}, {b}, {c}'
def vr(b,n): return f'v[{b}:{b+n-1}]'
def ar(b,n): return f'a[{b}:{b+n-1}]'

def setup():
    t='''
s_load_dwordx2 s[40:41], s[0:1], 8
s_load_dwordx2 s[42:43], s[0:1], 16
s_load_dwordx2 s[44:45], s[0:1], 24
s_load_dwordx2 s[46:47], s[0:1], 48
s_load_dwordx2 s[48:49], s[0:1], 80
v_lshrrev_b32 v1, 6, v0
v_and_b32 v0, 63, v0
s_nop 0
v_readfirstlane_b32 s3, v1
s_cmp_ge_u32 s2, 256
s_cbranch_scc1 KA_END
s_and_b32 s4, s2, 7
s_lshr_b32 s5, s2, 3
s_and_b32 s6, s5, 3
s_lshl_b32 s4, s4, 2
s_add_u32 s4, s4, s6
s_lshr_b32 s5, s5, 2
s_waitcnt lgkmcnt(0)
s_lshl_b32 s6, s4, 19
s_add_u32 s8, s40, s6
s_addc_u32 s9, s41, 0
s_mov_b32 s10, 0x80000
s_mov_b32 s11, 0x00020000
s_add_u32 s12, s42, s6
s_addc_u32 s13, s43, 0
s_mov_b32 s14, 0x80000
s_mov_b32 s15, 0x00020000
s_lshl_b32 s6, s4, 8
s_add_u32 s20, s44, s6
s_addc_u32 s21, s45, 0
s_sub_u32 s22, 0x500000, s6
s_mov_b32 s23, 0x00020000
s_lshl_b32 s6, s4, 7
s_add_u32 s24, s46, s6
s_addc_u32 s25, s47, 0
s_sub_u32 s26, 0x21c000, s6
s_mov_b32 s27, 0x00020000
'''
    t+=srd(16,48,XN_OFF,2621440)+srd(28,48,ACT_OFF,128*TBS)
    t+='''
v_and_b32 v1, 15, v0
v_lshrrev_b32 v2, 4, v0
v_lshrrev_b32 v3, 5, v0
v_lshrrev_b32 v4, 2, v1
v_and_b32 v5, 31, v0
'''
    for tt in range(8):
        t+=f'v_or_b32 v6, {2*tt}, v3\nv_xor_b32 v6, v6, v1\nv_lshlrev_b32 v6, 4, v6\nv_lshl_add_u32 v{KA+tt}, v5, 8, v6\n'
    t+='''
v_and_b32 v6, 1, v1
v_lshlrev_b32 v6, 4, v6
v_bfe_u32 v7, v1, 1, 1
v_lshl_or_b32 v6, v7, 3, v6
v_and_b32 v7, 1, v2
v_lshl_or_b32 v6, v7, 5, v6
'''
    for db in range(4):
        t+=f'''v_xor_b32 v7, {db}, v4
v_lshl_add_u32 v7, v7, 6, v6
v_lshl_add_u32 v27, v3, 2, v4
v_lshl_add_u32 v7, v27, 8, v7
v_add_u32 v{VA+db}, 0x10000, v7
v_lshl_add_u32 v{WA+db}, v3, 10, v{VA+db}
'''
    for fb in range(2):
        t+=f'''v_lshrrev_b32 v7, 1, v4
v_xor_b32 v7, {fb}, v7
v_lshl_add_u32 v7, v7, 6, v6
v_lshl_add_u32 v27, v3, 3, v4
v_lshl_add_u32 v{W1A+fb}, v27, 7, v7
'''
    t+='s_lshl_b32 s6, s3, 4\nv_add_u32 v27, s6, v2\n'
    for n in range(4):
        t+=f'v_or_b32 v7, {4*n}, v2\nv_xor_b32 v7, v7, v1\nv_lshlrev_b32 v7, 4, v7\nv_lshl_add_u32 v{KD+n}, v27, 8, v7\n'
    t+=f'''v_lshlrev_b32 v7, 2, v2
v_xor_b32 v7, v7, v1
v_lshlrev_b32 v7, 4, v7
v_lshl_add_u32 v{VD}, v27, 8, v7
v_lshl_add_u32 v{WQD}, v27, 13, v7
v_lshrrev_b32 v27, 3, v0
v_bfe_u32 v7, v27, 1, 1
v_lshlrev_b32 v7, 2, v7
v_and_b32 v28, 7, v0
v_xor_b32 v7, v7, v28
v_lshlrev_b32 v7, 4, v7
v_add_u32 v27, s6, v27
s_movk_i32 s7, 3456
v_mul_lo_u32 v27, v27, s7
v_add_u32 v{W1D}, v27, v7
v_lshlrev_b32 v{XD}, 4, v0
v_add_u32 v{XD+1}, 40960, v{XD}
v_lshrrev_b32 v7, 4, v5
s_mov_b32 s7, {TBS}
v_mul_lo_u32 v7, v7, s7
v_lshl_add_u32 v7, v3, 8, v7
v_lshl_add_u32 v{AD}, v1, 4, v7
s_lshl_b32 s30, s5, 3
s_lshl_b32 s31, s3, 1
s_add_u32 s30, s30, s31
'''
    t=t.replace('s_lshl_b32 s30, s5, 3\ns_lshl_b32 s31, s3, 1\ns_add_u32 s30, s30, s31\n',
      's_lshl_b32 s50, s5, 3\ns_lshl_b32 s51, s3, 1\ns_add_u32 s50, s50, s51\ns_mul_i32 s50, s50, 40960\n'
      f's_lshl_b32 s52, s5, 4\ns_lshl_b32 s51, s3, 2\ns_add_u32 s52, s52, s51\ns_mul_i32 s52, s52, {TBS}\n'
      's_lshl_b32 s53, s3, 12\ns_lshl_b32 s54, s3, 11\n')
    return t

def wdma(c):
    sl=c%4; g=[]
    for n in range(4):
        g.append(f's_add_u32 m0, s53, {65536+sl*16384+n*1024}\ns_mov_b32 s55, {(64*c+4*n)*8192}\nbuffer_load_dwordx4 v{WQD}, s[20:23], s55 offen lds')
    for n in range(2):
        g.append(f's_add_u32 m0, s54, {sl*16384+n*1024}\ns_mov_b32 s55, {(64*c+8*n)*3456}\nbuffer_load_dwordx4 v{W1D}, s[24:27], s55 offen lds')
    return g
XB=[32,64,96]
def xload(c):
    b=XB[c%3]; g=[f's_add_u32 s56, s50, {4096*c}']
    for tt in range(4):
        for qh in range(2):
            r=b+(tt*2+qh)*4
            g.append(f'buffer_load_dwordx4 {vr(r,4)}, v{XD+qh}, s[16:19], s56 offen offset:{1024*tt}')
    return g
def kvdma(kind,tile,slot,sreg):
    g=[]
    base=(0 if kind=='K' else 65536)+slot*16384
    sr='s[8:11]' if kind=='K' else 's[12:15]'
    for n in range(4):
        v=KD+n if kind=='K' else VD
        pre=f's_add_u32 m0, s53, {base}\n' if n==0 else ''
        nop='s_nop 0\n' if n==0 else ''
        g.append(pre+nop+f'buffer_load_dwordx4 v{v}, {sr}, {sreg} offen offset:{1024*n} lds')
    return g

def proj():
    t=''
    NC=10
    for g in wdma(0): t+=g+'\n'
    t+='\n'.join(xload(0))+'\n'
    for g in wdma(1): t+=g+'\n'
    t+='\n'.join(xload(1))+'\n'
    for g in wdma(2): t+=g+'\n'
    ins=[]
    def afrag(c,tt,j,buf):
        sl=c%4; r=KF+(buf*6+j)*4
        if j<4: ad=WA+j; o=sl*16384+(16*tt)*256; st=4*256
        else: ad=W1A+j-4; o=sl*16384+(16*tt)*128; st=4*128
        return [f'ds_read_b64_tr_b16 {ar(r,2)}, v{ad} offset:{o}', f'ds_read_b64_tr_b16 {ar(r+2,2)}, v{ad} offset:{o+st}']
    body=''
    for c in range(NC):
        rem=(6 if c+1<NC else 0)+(8 if c+1<NC else 0)+(6 if c+2<NC else 0)
        body+=f's_waitcnt vmcnt({rem})\ns_barrier\n'
        extra=[]
        if c+2<NC: extra+=xload(c+2)
        if c+3<NC: extra+=wdma(c+3)
        if c==0:
            for j in range(6): body+='\n'.join(afrag(c,0,j,0))+'\n'
        for tt in range(4):
            step=c*4+tt; buf=step%2
            nxt=[]
            if tt<3:
                for j in range(6): nxt+=afrag(c,tt+1,j,1-buf)
            elif c+1<NC:
                nxt=None
            k=0
            for j in range(6):
                for qh in range(2):
                    a=ar(KF+(buf*6+j)*4,4); b=vr(XB[c%3]+(tt*2+qh)*4,4)
                    if j<4: d=ar((qh*4+j)*16,16)
                    else: d=vr(Q+(qh*2+j-4)*16,16)
                    body+=mf(d,a,b,'0' if step==0 else d)+'\n'
                    if nxt: body+=nxt.pop(0)+'\n'
                    if extra and k%2==1: body+=extra.pop(0)+'\n'
                    k+=1
        body+='\n'.join(extra)+'\n'
        if c+1<NC:
            pass
        if c+1<NC:
            body+='@NEXT%d@\n'%(c+1)
    for c in range(1,NC):
        body=body.replace('@NEXT%d@\n'%c,'')
    lines=body.split('\n'); out=[]; c=-1
    for ln in lines:
        out.append(ln)
        if ln=='s_barrier':
            c+=1
            if c>0:
                for j in range(6): out+=afrag(c,0,j,(c*4)%2)
    return t+'\n'.join(out)+'\n'

def silu_store(base,qh,fb,soff_reg):
    t=''
    T=32
    for r in range(16): t+=f'v_mul_f32 v{T+r}, 0xbfb8aa3b, v{base+r}\n'
    for r in range(16): t+=f'v_exp_f32 v{T+r}, v{T+r}\n'
    for r in range(16): t+=f'v_add_f32 v{T+r}, 1.0, v{T+r}\n'
    for r in range(16): t+=f'v_rcp_f32 v{T+r}, v{T+r}\n'
    for r in range(16): t+=f'v_mul_f32 v{T+r}, v{base+r}, v{T+r}\n'
    D=48+8*((qh*2+fb)%2)
    for k in range(8): t+=f'v_cvt_pk_bf16_f32 v{D+k}, v{T+2*k}, v{T+2*k+1}\n'
    for c in range(2):
        t+=f'buffer_store_dwordx4 {vr(D+4*c,4)}, v{AD}, s[28:31], {soff_reg} offen offset:{fb*1024+c*512}\n'
    return t

def proj_epi():
    t='s_barrier\n'
    for tile in range(4):
        t+=f's_mov_b32 s55, {tile*16384}\n'
        for g in kvdma('K',tile,tile,'s55'): t+=g+'\n'
        if tile<3:
            for g in kvdma('V',tile,tile,'s55'): t+=g+'\n'
    t+='s_mov_b32 s57, %d\ns_mov_b32 s58, %d\n'%(4*16384,3*16384)
    t+='s_cmp_ge_u32 s4, 27\ns_cbranch_scc1 KA_NOH\n'
    t+=f's_lshl_b32 s55, s4, 11\ns_add_u32 s55, s55, {128*1024}\ns_add_u32 s55, s55, s52\ns_add_u32 s56, s55, {2*TBS}\n'
    for qh in range(2):
        for fb in range(2):
            t+=silu_store(Q+(qh*2+fb)*16,qh,fb,'s55' if qh==0 else 's56')
    t+='KA_NOH:\ns_nop 7\ns_nop 7\n'
    t+='s_mov_b32 s55, 0x3e0293ee\n'
    for qh in range(2):
        for db in range(4):
            a=(qh*4+db)*16
            for r in range(16): t+=f'v_accvgpr_read_b32 v{32+r}, a{a+r}\n'
            for r in range(16): t+=f'v_mul_f32 v{32+r}, s55, v{32+r}\n'
            for k in range(8):
                dst=Q+(qh*8+2*db+k//4)*4+k%4
                t+=f'v_cvt_pk_bf16_f32 v{dst}, v{32+2*k}, v{33+2*k}\n'
    return t

def kread(slot,kb,tt):
    return f'ds_read_b128 {ar(KF+4*tt,4)}, v{KA+tt} offset:{slot*16384+kb*8192}'
def vread(slot,un,tp,db):
    f=VF+(tp*4+db)*4; o=slot*16384+(32*un+16*tp)*256
    return [f'ds_read_b64_tr_b16 {ar(f,2)}, v{VA+db} offset:{o}', f'ds_read_b64_tr_b16 {ar(f+2,2)}, v{VA+db} offset:{o+8*256}']
def qk_mfmas(sb,cinit):
    r=[]
    for tt in range(8):
        for qh in range(2):
            d=vr(S[sb]+16*qh,16)
            c=d if tt>0 else (vr(NEG+16*qh,16) if cinit else '0')
            r.append(mf(d,ar(KF+4*tt,4),vr(Q+(qh*8+tt)*4,4),c))
    return r
def pv_mfmas(pb,first=False):
    r=[]
    for tp in range(2):
        for db in range(4):
            for qh in range(2):
                d=ar((qh*4+db)*16,16)
                r.append(mf(d,ar(VF+(tp*4+db)*4,4),vr(P[pb]+(qh*2+tp)*4,4),'0' if (first and tp==0) else d))
    return r
def sm_ops(sb,pb):
    r=[]
    for tp in range(2):
        for qh in range(2):
            for e in range(8):
                s=S[sb]+16*qh+8*tp+e
                ex=f'v_exp_f32 v{s}, v{s}'
                ad=f'v_add_f32 v{L+qh}, v{L+qh}, v{s}'
                cv=None
                if e%2==1: cv=f'v_cvt_pk_bf16_f32 v{P[pb]+(qh*2+tp)*4+e//2}, v{s-1}, v{s}'
                r.append((ex,ad,cv))
    return r

SM0=19
def iteration(j4, last=False, first=False, dma=True, pre=False):
    gaps=[[] for _ in range(64+24)]
    m=qk_mfmas(1,True)+pv_mfmas(0,first)+qk_mfmas(0,True)+pv_mfmas(1)
    def place(ops,g0):
        for i,(ex,ad,cv) in enumerate(ops):
            g=g0+i
            gaps[g].append(('e',ex)); gaps[g+1].append(('a',ad))
            if cv: gaps[g+1].append(('c',cv))
    place(sm_ops(1,1),SM0)
    place(sm_ops(0,0),SM0+32)
    wrap=gaps[64:]; gaps=gaps[:64]
    if last:
        for g in range(SM0+32,64): gaps[g]=[x for x in gaps[g] if not is_s0(x[1])]
    for g,w in enumerate(wrap): gaps[g]=w+gaps[g]
    vs=j4; ks=(j4+1)%4
    v0=[];v1=[]
    for tp in range(2):
        for db in range(4): v0+=vread(vs,0,tp,db); v1+=vread(vs,1,tp,db)
    for i,x in enumerate(v0): gaps[i].append(('d',x))
    for i,x in enumerate(v1): gaps[32+i].append(('d',x))
    if not last:
        for tt in range(8):
            gaps[16+2*tt].append(('d',kread(ks,0,tt)))
            gaps[48+2*tt].append(('d',kread(ks,1,tt)))
    if dma:
        kd=kvdma('K',0,j4,'s57'); vd=kvdma('V',0,(j4+3)%4,'s58')
        for n in range(4):
            if dma!='V': gaps[17+4*n].append(('m',kd[n]))
            gaps[49+4*n].append(('m',vd[n]))
        gaps[33].append(('s','s_add_u32 s57, s57, 16384')); gaps[63].append(('s','s_add_u32 s58, s58, 16384'))
    t=''
    if pre:
        for g in range(48,64):
            for k,x in gaps[g]:
                if k in('m','s'): continue
                if k in('e','a','c') and not is_s0(x): continue
                t+=x+'\n'
        return t
    for g in range(64):
        if not(last and 32<=g<48): t+=m[g]+'\n'
        for k,x in gaps[g]: t+=x+'\n'
    return t
def is_s0(x):
    import re
    rs=[int(a) for a in re.findall(r'v(\d+)',x)]
    return any(S[0]<=r<S[0]+32 for r in rs)

def attn_prologue():
    t='s_waitcnt vmcnt(20)\ns_barrier\n'
    return t

def rowmax(sb):
    t=''
    for qh in range(2):
        b=S[sb]+16*qh; m=1+qh
        t+=f'v_max3_f32 v{m}, v{b}, v{b+1}, v{b+2}\n'
        for r in range(3,15,2): t+=f'v_max3_f32 v{m}, v{m}, v{b+r}, v{b+r+1}\n'
        t+=f'v_max_f32 v{m}, v{m}, v{b+15}\nv_mov_b32 v{m+2}, v{m}\ns_nop 1\nv_permlane32_swap_b32 v{m}, v{m+2}\nv_max_f32 v{m}, v{m}, v{m+2}\n'
    return t

def build(with_fallback=True, thr='0x7b000000'):
    t=setup()+proj()+proj_epi()
    t+='s_cmp_ge_u32 s4, 27\ns_cbranch_scc1 KA_W27\ns_waitcnt vmcnt(24)\ns_branch KA_W28\nKA_W27:\ns_waitcnt vmcnt(16)\nKA_W28:\ns_barrier\n'
    for tt in range(8): t+=kread(0,0,tt)+'\n'
    t+='\n'.join(qk_mfmas(0,False))+'\n'
    t+=rowmax(0)
    for qh in range(2):
        for r in range(16):
            t+=f'v_sub_f32 v{NEG+16*qh+r}, 0, v{1+qh}\n'
        for r in range(16):
            t+=f'v_sub_f32 v{S[0]+16*qh+r}, v{S[0]+16*qh+r}, v{1+qh}\n'
    t+=f'v_mov_b32 v{L}, 0\nv_mov_b32 v{L+1}, 0\n'
    t+=iteration(3,pre=True)
    t+='s_waitcnt vmcnt(0) lgkmcnt(0)\n'
    head=finish(t,'ka_head')
    def sup(first=False,last=False):
        s=''
        for j4 in range(4):
            s+='s_waitcnt vmcnt(16) lgkmcnt(2)\ns_barrier\n' if not last else f's_waitcnt vmcnt({[16,12,4,0][j4]}) lgkmcnt(2)\ns_barrier\n'
            s+=iteration(j4,last=(last and j4==3),first=(first and j4==0),dma=True if not last else ('V' if j4==0 else False))
        return s
    def sched(txt,entry,name):
        ins=parse(txt); ins,q=auto_lgkm(ins,entry);
        return ins,q
    b0,q0=sched(sup(first=True),[],'b0')
    _,q1=sched(sup(),q0,'b1'); b1,q1=sched(sup(),q1,'b1'); b1b,q1b=sched(sup(),q1,'b1')
    assert [a for a,b in q0]==[a for a,b in q1][len(q1)-len(q0):],(q0,q1)
    assert text(b1)==text(b1b) and q1==q1b, (q1,q1b)
    b2,q2=sched(sup(last=True),q1,'b2')
    allins=b0+b1+b1
    _,nh=hazards(allins,fix=False,name='loop')
    assert nh==0, nh
    b2,_=hazards(b2,fix=True)
    t=text(b0)+'s_mov_b32 s59, 6\nKA_LOOP:\n'+text(b1)+'s_sub_u32 s59, s59, 1\ns_cmp_lg_u32 s59, 0\ns_cbranch_scc1 KA_LOOP\n'+text(b2)
    e='s_waitcnt lgkmcnt(0)\ns_nop 7\ns_nop 7\n'
    for qh in range(2):
        e+=f'v_mov_b32 v{1+qh}, v{L+qh}\ns_nop 1\nv_permlane32_swap_b32 v{L+qh}, v{1+qh}\nv_add_f32 v{L+qh}, v{L+qh}, v{1+qh}\n'
    e+='@CHECK@\nKA_NORM:\n'
    e+=f'v_rcp_f32 v{L}, v{L}\nv_rcp_f32 v{L+1}, v{L+1}\n'
    e+=f's_lshl_b32 s55, s4, 12\ns_add_u32 s55, s55, s52\ns_add_u32 s56, s55, {2*TBS}\n'
    k=0
    for qh in range(2):
        for db in range(4):
            a=(qh*4+db)*16; T=32+32*(k%2); D=T+16; k+=1
            for r in range(16): e+=f'v_accvgpr_read_b32 v{T+r}, a{a+r}\n'
            for r in range(16): e+=f'v_mul_f32 v{T+r}, v{L+qh}, v{T+r}\n'
            for x in range(8): e+=f'v_cvt_pk_bf16_f32 v{D+x}, v{T+2*x}, v{T+2*x+1}\n'
            for c in range(2):
                e+=f'buffer_store_dwordx4 {vr(D+4*c,4)}, v{AD}, s[28:31], {"s55" if qh==0 else "s56"} offen offset:{db*1024+c*512}\n'
    e+='KA_END:\ns_endpgm\n'
    e=e.replace('@CHECK@\n','')
    return head+t+finish(e,'ka_epi')
```

```python
import sys
from k0k3 import k0,k3
import ka
NAME='recurrent_scan__mha_block_cached__dense_activation_silu__prompt'
def desc(n,vg,acc,sg=96):
    return f'''.amdhsa_kernel {n}
  .amdhsa_next_free_vgpr {vg}
  .amdhsa_next_free_sgpr {sg}
  .amdhsa_accum_offset {acc}
  .amdhsa_group_segment_fixed_size 0
  .amdhsa_kernarg_size 88
  .amdhsa_user_sgpr_count 2
  .amdhsa_user_sgpr_kernarg_segment_ptr 1
  .amdhsa_system_sgpr_workgroup_id_x 1
.end_amdhsa_kernel
'''
def kern(n,body):
    return f'.globl {n}\n.p2align 8\n.type {n},@function\n{n}:\n{body}\n'
def gen(path, which=('k0','ka','k3'), **kw):
    L={'k0':'; @launch kernel=pre_kernel grid=(492,1,1) block=(256,1,1) lds=20480\n',
       'ka':'; @launch kernel=attn_kernel grid=(256,1,1) block=(256,1,1) lds=135168\n',
       'k3':'; @launch kernel=out_kernel grid=(256,1,1) block=(256,1,1) lds=122880\n'}
    s=''.join(L[k] for k in which)
    s+='; generated by gen/gen.py: LN+relayout, (Q/H projection + flash attention), output GEMMs\n'
    s+='.amdgcn_target "amdgcn-amd-amdhsa--gfx950"\n.text\n'
    s+=kern('pre_kernel',k0())+kern('attn_kernel',ka.build(**kw))+kern('out_kernel',k3())
    s+='.section .rodata,"a"\n.p2align 6\n'+desc('pre_kernel',72,72)+'.p2align 6\n'+desc('attn_kernel',512,256)+'.p2align 6\n'+desc('out_kernel',416,256)
    open(path,'w').write(s)
if __name__=='__main__':
    gen('cdna_kernels/'+NAME+'.s')
```

```python
import re
RE_REG = re.compile(r'^(-|abs\()?([vas])(?:\[(\d+):(\d+)\]|(\d+))\)?$')
def regs(op):
    op = op.strip()
    if op == 'vcc': return {('s','vcc')}
    if op == 'm0': return {('s','m0')}
    if op == 'exec': return {('s','exec')}
    m = RE_REG.match(op)
    if not m: return set()
    k = m.group(2)
    if m.group(3) is not None:
        return {(k,i) for i in range(int(m.group(3)), int(m.group(4))+1)}
    return {(k,int(m.group(5)))}
TRANS = ('v_exp_f32','v_log_f32','v_rcp_f32','v_rsq_f32','v_sqrt_f32')
class I:
    __slots__=('t','op','kind','d','u','passes','cu')
    def __init__(s, t):
        s.t = t.strip()
        tt = s.t.split(';')[0].strip()
        s.d=set(); s.u=set(); s.passes=0; s.cu=set()
        if tt.endswith(':') or tt.startswith('.') or tt=='':
            s.op='label'; s.kind='label'; return
        p = tt.split(None,1)
        s.op = p[0]
        ops = [o.strip() for o in p[1].split(',')] if len(p)>1 else []
        ops = [o.split()[0] if o and not o.startswith('hwreg') else o for o in ops]
        op = s.op
        R = [regs(o) for o in ops]
        def U(lst):
            r=set()
            for x in lst: r|=x
            return r
        if op.startswith('v_mfma'):
            s.kind='mfma'; s.d=R[0]; s.u=U(R[1:]); s.cu=R[3]
            s.passes = 8 if '32x32' in op else 4
        elif op.startswith('ds_'):
            s.kind='ds'
            if op.startswith('ds_read') or 'permute' in op or 'swizzle' in op: s.d=R[0]; s.u=U(R[1:])
            else: s.u=U(R)
        elif op.startswith('buffer_') or op.startswith('global_'):
            s.kind='vmem'
            if 'load' in op and not tt.endswith('lds') and ' lds' not in tt: s.d=R[0]; s.u=U(R[1:])
            else:
                s.u=U(R)
                if ' lds' in tt: s.u|={('s','m0')}
        elif op.startswith('s_waitcnt'): s.kind='wait'
        elif op.startswith('s_nop'): s.kind='nop'
        elif op.startswith('s_load'): s.kind='smem'; s.d=R[0]; s.u=U(R[1:])
        elif op.startswith('s_'):
            s.kind='salu'
            if op.startswith('s_cmp') or op.startswith('s_bitcmp') or op.startswith('s_cbranch') or op in('s_branch','s_barrier','s_endpgm','s_setprio'):
                s.u=U(R)
            else:
                s.d=R[0] if R else set(); s.u=U(R[1:])
        elif op.startswith('v_'):
            s.kind='trans' if op.replace('_e32','').replace('_e64','') in TRANS else 'valu'
            s.d=set(R[0]); s.u=U(R[1:])
            if op.startswith('v_cmp'):
                pass
            if op.startswith('v_fmac') or op.startswith('v_dot2c') or op.startswith('v_permlane'): s.u|=R[0]
            if op.startswith('v_permlane'): s.d|=R[1]
            if '_dpp' in op: s.u|=R[0]
            if op.startswith('v_add_co') or op.startswith('v_addc_co'): s.d|=R[1];
            if op.startswith('v_cndmask') and len(ops)==3: s.u|={('s','vcc')}
        else:
            raise Exception('unknown '+t)
    def states(s):
        if s.kind=='label': return 0
        if s.kind=='nop': return int(s.t.split()[1],0)+1
        return 1

def parse(text):
    return [I(l) for l in text.strip('\n').split('\n') if l.strip()]

def auto_lgkm(ins, entry=None, eager=20):
    q = [[set(a),b] for a,b in (entry or [])]; out=[]
    for i in ins:
        for e in q: e[1]+=1
        if i.kind=='wait' and 'lgkmcnt' in i.t:
            n=int(re.search(r'lgkmcnt\((\d+)\)',i.t).group(1))
            while len(q)>n: q.pop(0)
            out.append(i); continue
        if i.kind=='label' or i.kind=='nop':
            out.append(i); continue
        touch = i.u | i.d
        need=-1
        for k,(dst,age) in enumerate(q):
            if dst & touch: need=k
        if need>=0:
            while need+1<len(q) and q[need+1][1]>=eager: need+=1
        if i.kind=='smem':
            assert not q, 'smem with ds outstanding'
        if need>=0:
            n=len(q)-need-1
            n=min(n,15)
            out.append(I('s_waitcnt lgkmcnt(%d)'%n))
            while len(q)>n: q.pop(0)
        out.append(i)
        if i.kind=='ds':
            q.append([set(i.d),0])
            pass
    return out,[(sorted(a),b) for a,b in q]

def hazards(ins, fix=True, name='', verbose=True):
    out=[]; hist=[]
    nfix=0
    for i in ins:
        if i.kind=='label':
            out.append(i); continue
        need=0
        dist=0
        for p in reversed(out):
            if p.kind=='label': continue
            if dist>=20: break
            req=0
            isv = i.kind in('valu','trans')
            if p.kind=='mfma':
                big = p.passes==8
                if i.kind=='mfma':
                    ab = i.u - i.cu
                    if p.d & ab: req=max(req,12 if big else 8)
                    if (p.d & i.cu) and p.d!=i.cu: req=max(req,10 if big else 6)
                    if (p.d & i.cu) and p.d==i.cu and p.passes!=i.passes: req=max(req,10 if big else 6)
                elif isv or i.kind in('ds','vmem'):
                    if p.d & (i.u|i.d): req=max(req,12 if big else 8)
                    if isv and (p.cu & i.d): req=max(req,7 if big else 3)
            elif p.kind in('valu','trans'):
                vd={r for r in p.d if r[0] in 'va'}
                sd={r for r in p.d if r[0]=='s'}
                if i.kind=='mfma' and vd & i.u: req=max(req,2)
                if p.kind=='trans' and isv and vd & i.u: req=max(req,1)
                if isv and ('permlane' in i.op or '_dpp' in i.op) and vd & i.u: req=max(req,2)
                if isv and ('readlane' in i.op or 'readfirstlane' in i.op) and vd & i.u: req=max(req,1)
                if i.kind=='vmem' and sd & i.u: req=max(req,5)
                if isv and sd & i.u: req=max(req,2)
                if i.kind=='salu' and sd & i.u: req=max(req,4)
            elif p.kind=='vmem':
                if 'store' in p.op and ('x4' in p.op or 'x3' in p.op) and (i.d & p.u) and i.kind!='salu': req=max(req,2)
            elif p.kind=='salu':
                if ('s','m0') in p.d and i.kind=='vmem' and ('s','m0') in i.u: req=max(req,1)
            need=max(need,req-dist)
            dist+=p.states()
        if need>0:
            nfix+=1
            if not fix:
                print('HAZARD',name,'need',need,'before',i.t)
            else:
                while need>0:
                    k=min(need,16); out.append(I('s_nop %d'%(k-1))); need-=k
        out.append(i)
    return out,nfix

def text(ins):
    return '\n'.join(('' if i.kind=='label' else '    ')+i.t for i in ins)+'\n'

def auto_vm(txt, entry=None):
    q=list(entry or []); out=[]
    for ln in txt.split('\n'):
        st=ln.strip()
        if st.startswith('@NEED'):
            p=st.split(None,2); tags=p[1].split(',')
            idx=-1
            for k,tg in enumerate(q):
                if tg in tags: idx=k
            n=len(q)-idx-1 if idx>=0 else None
            ex=(' '+p[2]) if len(p)>2 else ''
            if n is not None:
                assert n<=63
                out.append(f's_waitcnt vmcnt({n}){ex}'); q=q[idx+1:]
            elif ex: out.append('s_waitcnt'+ex)
            continue
        if st.startswith('buffer_') or st.startswith('global_'):
            m=re.search(r'; tag=(\S+)',st); q.append(m.group(1) if m else '?')
        out.append(ln)
    return '\n'.join(out), q
```

```python
from asmlib import *
XN_OFF=0; WT_OFF=0x280000; ACT_OFF=0xA00000; WS_SIZE=268435456
TBS=182*1024

def srd(s, base, off, size):
    r=''
    if off:
        r+=f's_add_u32 s{s}, s{base}, {hex(off)}\ns_addc_u32 s{s+1}, s{base+1}, 0\n'
    else:
        r+=f's_mov_b32 s{s}, s{base}\ns_mov_b32 s{s+1}, s{base+1}\n'
    r+=f's_mov_b32 s{s+2}, {hex(size)}\ns_mov_b32 s{s+3}, 0x00020000\n'
    return r

DIAG=[False]
DBG_OFF=0x4000000
def stamp(k):
    if not DIAG[0]: return ''
    return f's_waitcnt lgkmcnt(0)\ns_memtime s[{64+2*k}:{65+2*k}]\ns_waitcnt lgkmcnt(0)\n' if k not in (0,7) else f's_waitcnt lgkmcnt(0)\ns_memtime s[{64+2*k}:{65+2*k}]\ns_memrealtime s[{80+(2 if k else 0)}:{81+(2 if k else 0)}]\ns_waitcnt lgkmcnt(0)\n'
def stamp_out(wsreg,slot):
    if not DIAG[0]: return ''
    t=f's_load_dwordx2 s[84:85], s[0:1], 80\ns_waitcnt lgkmcnt(0)\ns_add_u32 s84, s84, {DBG_OFF+slot*32768}\ns_addc_u32 s85, s85, 0\ns_mov_b32 s86, 32768\ns_mov_b32 s87, 0x00020000\n'
    t+='s_lshl_b32 s88, s2, 7\ns_cmp_lg_u32 s3, 0\ns_cbranch_scc1 STAMP_SKIP%d\nv_mov_b32 v2, s88\n'%slot
    for k in range(20):
        t+=f'v_mov_b32 v1, s{64+k}\nbuffer_store_dword v1, v2, s[84:87], 0 offen offset:{4*k}\ns_nop 1\n'
    t+='STAMP_SKIP%d:\n'%slot
    return t
def finish(t, name=''):
    ins=parse(t)
    ins,_=auto_lgkm(ins)
    ins,n=hazards(ins,fix=True,name=name)
    return text(ins)

def k0():
    t='''
s_load_dwordx2 s[4:5], s[0:1], 0
s_load_dwordx2 s[6:7], s[0:1], 32
s_load_dwordx2 s[8:9], s[0:1], 56
s_load_dwordx2 s[10:11], s[0:1], 80
v_lshrrev_b32 v1, 6, v0
v_and_b32 v0, 63, v0
s_nop 0
v_readfirstlane_b32 s3, v1
s_cmp_ge_u32 s2, 492
s_cbranch_scc1 K0_END
s_waitcnt lgkmcnt(0)
s_cmp_ge_u32 s2, 128
s_cbranch_scc1 K0_RELAY
'''
    t+=srd(12,4,0,2621440)+srd(16,10,XN_OFF,2621440)
    t+='''
s_lshl_b32 s20, s2, 4
s_lshl_b32 s21, s3, 2
s_add_u32 s20, s20, s21
v_lshrrev_b32 v1, 4, v0
v_add_u32 v1, s20, v1
v_and_b32 v2, 15, v0
s_movk_i32 s22, 1280
v_mul_lo_u32 v3, v1, s22
v_lshl_add_u32 v3, v2, 4, v3
'''
    for n in range(5):
        t+=f'buffer_load_dwordx4 v[{8+4*n}:{11+4*n}], v3, s[12:15], 0 offen offset:{256*n}\n'
    t+='''
v_lshrrev_b32 v4, 4, v1
s_mov_b32 s22, 20480
v_mul_lo_u32 v4, v4, s22
v_lshl_add_u32 v4, v2, 8, v4
v_and_b32 v5, 15, v1
v_lshl_add_u32 v4, v5, 4, v4
'''
    for n in range(5):
        t+=f's_waitcnt vmcnt({4-n})\n'
        for k in range(4):
            r=8+4*n+k; o=32+8*n+2*k
            t+=f'v_lshlrev_b32 v{o}, 16, v{r}\nv_and_b32 v{o+1}, 0xffff0000, v{r}\n'
    def reduce16(v):
        s=''
        for ror in (8,4,2,1):
            s+=f's_nop 1\nv_add_f32_dpp v{v}, v{v}, v{v} row_ror:{ror} row_mask:0xf bank_mask:0xf\n'
        return s
    t+='v_add_f32 v6, v32, v33\nv_add_f32 v7, v34, v35\n'
    for k in range(36,72,2):
        t+=f'v_add_f32 v6, v6, v{k}\nv_add_f32 v7, v7, v{k+1}\n'
    t+='v_add_f32 v6, v6, v7\n'+reduce16(6)
    t+='v_mul_f32 v6, 0x3acccccd, v6\n'
    for k in range(32,72): t+=f'v_sub_f32 v{k}, v{k}, v6\n'
    t+='v_mul_f32 v7, v32, v32\nv_mul_f32 v6, v33, v33\n'
    for k in range(34,72,2):
        t+=f'v_fmac_f32 v7, v{k}, v{k}\nv_fmac_f32 v6, v{k+1}, v{k+1}\n'
    t+='v_add_f32 v7, v6, v7\n'+reduce16(7)
    t+='v_mov_b32 v6, 0x3727c5ac\nv_fmac_f32 v6, 0x3acccccd, v7\nv_rsq_f32 v6, v6\ns_nop 0\n'
    for k in range(32,72): t+=f'v_mul_f32 v{k}, v{k}, v6\n'
    for n in range(5):
        for k in range(4):
            o=32+8*n+2*k
            t+=f'v_cvt_pk_bf16_f32 v{8+4*n+k}, v{o}, v{o+1}\n'
        t+=f's_mov_b32 s22, {4096*n}\nbuffer_store_dwordx4 v[{8+4*n}:{11+4*n}], v4, s[16:19], s22 offen sc1\n'
    t+='s_endpgm\nK0_RELAY:\n'
    t+='''
s_sub_u32 s20, s2, 128
s_lshl_b32 s20, s20, 2
s_add_u32 s20, s20, s3
s_lshr_b32 s21, s20, 3
s_and_b32 s22, s20, 7
s_cmp_lt_u32 s21, 128
s_cselect_b32 s12, s6, s8
s_cselect_b32 s13, s7, s9
s_mov_b32 s14, 0x21c000
s_cselect_b32 s14, 0x500000, s14
s_cselect_b32 s23, 0, 128
s_mov_b32 s15, 0x00020000
s_sub_u32 s23, s21, s23
s_mul_i32 s23, s23, 40960
s_mul_i32 s24, s22, 160
s_add_u32 s23, s23, s24
'''
    t+=srd(16,10,WT_OFF,8*182*5120)
    t+='''
s_mul_i32 s24, s22, 182
s_add_u32 s24, s24, s21
s_mul_i32 s24, s24, 5120
s_mul_i32 s25, s3, 5120
s_movk_i32 s26, 6554
s_movk_i32 s27, 1120
'''
    for n in range(5):
        t+=f'''v_add_u32 v1, {64*n}, v0
v_mul_lo_u32 v2, v1, s26
v_lshrrev_b32 v2, 16, v2
v_mul_lo_u32 v2, v2, s27
v_lshl_add_u32 v2, v1, 4, v2
buffer_load_dwordx4 v[{8+4*n}:{11+4*n}], v2, s[12:15], s23 offen
'''
    t+='''
v_lshl_add_u32 v3, v0, 4, s25
v_lshrrev_b32 v4, 4, v0
v_and_b32 v5, 15, v0
v_lshrrev_b32 v6, 2, v5
v_lshl_add_u32 v6, v4, 2, v6
s_movk_i32 s26, 160
v_mul_lo_u32 v6, v6, s26
v_and_b32 v5, 3, v5
v_lshl_add_u32 v6, v5, 3, v6
v_add_u32 v6, s25, v6
v_lshlrev_b32 v7, 4, v0
'''
    for n in range(5):
        t+=f's_waitcnt vmcnt({4-n})\nds_write_b128 v3, v[{8+4*n}:{11+4*n}] offset:{1024*n}\n'
    t+='s_waitcnt lgkmcnt(0)\n'
    for cb in range(5):
        t+=f'ds_read_b64_tr_b16 v[{32+4*cb}:{33+4*cb}], v6 offset:{32*cb}\n'
        t+=f'ds_read_b64_tr_b16 v[{34+4*cb}:{35+4*cb}], v6 offset:{32*cb+2560}\n'
    for cb in range(5):
        t+=f's_add_u32 s25, s24, {1024*cb}\nbuffer_store_dwordx4 v[{32+4*cb}:{35+4*cb}], v7, s[16:19], s25 offen sc1\n'
    t+='K0_END:\ns_endpgm\n'
    return finish(t,'k0')

def k3(D=5,WFLAG='',AFLAG=''):
    NS=46
    t='''
s_load_dwordx2 s[4:5], s[0:1], 0
s_load_dwordx2 s[6:7], s[0:1], 64
s_load_dwordx2 s[10:11], s[0:1], 80
v_lshrrev_b32 v1, 6, v0
v_and_b32 v0, 63, v0
s_nop 0
v_readfirstlane_b32 s3, v1
s_cmp_ge_u32 s2, 256
s_cbranch_scc1 K3_END
s_and_b32 s20, s2, 7
s_lshr_b32 s21, s2, 3
s_lshr_b32 s22, s21, 3
s_lshl_b32 s20, s20, 2
s_add_u32 s20, s20, s22
s_and_b32 s21, s21, 7
s_waitcnt lgkmcnt(0)
'''
    t+=srd(12,10,WT_OFF,WS_SIZE-WT_OFF)+srd(16,10,ACT_OFF,WS_SIZE-ACT_OFF)
    t+=srd(24,4,0,2621440)+srd(28,6,0,2621440)
    t+=f'''
s_mul_i32 s32, s21, {182*5120}
s_mul_i32 s33, s3, 5120
s_add_u32 s32, s32, s33
s_mul_i32 s33, s20, {4*TBS}
s_lshl_b32 s34, s3, 10
s_add_u32 s33, s33, s34
v_lshlrev_b32 v1, 4, v0
v_add_u32 v2, 0x1000, v1
v_add_u32 v3, {TBS}, v1
v_add_u32 v4, {2*TBS}, v1
v_add_u32 v5, {3*TBS}, v1
'''
    t+='''
s_lshl_b32 s34, s20, 6
s_lshl_b32 s35, s3, 4
s_add_u32 s34, s34, s35
v_and_b32 v6, 15, v0
v_add_u32 v6, s34, v6
s_movk_i32 s35, 1280
v_mul_lo_u32 v6, v6, s35
v_lshrrev_b32 v7, 4, v0
v_lshl_add_u32 v6, v7, 3, v6
s_mul_i32 s35, s21, 160
v_add_u32 v6, s35, v6
'''
    SB=16
    DV=min(D,6)
    def stage(n):
        k=n%D
        return ('v',SB+36*k) if k<DV else ('a',160+36*(k-DV))
    def rg(st,o): return f'{st[0]}[{st[1]+o}:{st[1]+o+3}]'
    def loads(n):
        b=stage(n); s=''
        for cb in range(4):
            s+=f'buffer_load_dwordx4 {rg(b,4*cb)}, v1, s[12:15], s32 offen offset:{1024*cb}{WFLAG}\n'
        s+=f'buffer_load_dwordx4 {rg(b,16)}, v2, s[12:15], s32 offen{WFLAG}\n'
        for tb,vr in enumerate((1,3,4,5)):
            s+=f'buffer_load_dwordx4 {rg(b,20+4*tb)}, v{vr}, s[16:19], s33 offen{AFLAG}\n'
        s+='s_add_u32 s32, s32, 20480\ns_add_u32 s33, s33, 4096\n'
        return s
    t+=stamp(0)
    for n in range(D-1): t+=loads(n)
    XR=SB+36*DV
    for n in range(NS):
        if n+D-1<NS: t+=loads(n+D-1)
        rem=min(D-1,NS-1-n)
        t+=f's_waitcnt vmcnt({9*rem})\n'
        if n==NS-1:
            for cb in range(5):
                t+=f'buffer_load_dwordx2 v[{XR+2*cb}:{XR+2*cb+1}], v6, s[24:27], 0 offen offset:{32*cb}\n'
            t+='s_cmp_ge_u32 s3, 2\ns_cbranch_scc1 K3_SKIP\n'
        b=stage(n)
        accb = 0 if n<32 else 80
        first = n in (0,32)
        for tb in range(4):
            for cb in range(5):
                a=accb+(tb*5+cb)*4
                c='0' if first else f'a[{a}:{a+3}]'
                t+=f'v_mfma_f32_16x16x32_bf16 a[{a}:{a+3}], {rg(b,4*cb)}, {rg(b,20+4*tb)}, {c}\n'
    t+='K3_SKIP:\ns_nop 7\n'+stamp(1)
    t+='v_lshlrev_b32 v7, 4, v0\n'
    for w in range(4):
        t+=f's_cmp_lg_u32 s3, {w}\ns_cbranch_scc1 K3_W{w}\n'
        for k in range(3):
            tb=(w+1+k)&3
            for part in range(2):
                for cb in range(5):
                    a=part*80+(tb*5+cb)*4
                    off=(tb*3+k)*10240+(part*5+cb)*1024
                    if off<65536: t+=f'ds_write_b128 v7, a[{a}:{a+3}] offset:{off}\n'
                    else: t+=f'ds_write_b128 v8, a[{a}:{a+3}] offset:{off-65536}\n'
            if k==0 and False: pass
        for part in range(2):
            for cb in range(5):
                a=part*80+(w*5+cb)*4
                for r in range(4):
                    t+=f'v_accvgpr_read_b32 v{SB+part*20+cb*4+r}, a{a+r}\n'
        t+=f'K3_W{w}:\n'
    t=t.replace('v_lshlrev_b32 v7, 4, v0\ns_cmp_lg_u32 s3, 0','v_lshlrev_b32 v7, 4, v0\nv_add_u32 v8, 0x10000, v7\ns_cmp_lg_u32 s3, 0')
    t+='s_waitcnt lgkmcnt(0)\ns_barrier\n'
    t+='s_mul_i32 s34, s3, 30720\nv_add_u32 v7, s34, v7\n'
    RB=SB+40
    for k in range(3):
        for q in range(10):
            t+=f'ds_read_b128 v[{RB+40*k+4*q}:{RB+40*k+4*q+3}], v7 offset:{k*10240+q*1024}\n'
    for k in range(3):
        for q in range(40):
            t+=f'v_add_f32 v{SB+q}, v{SB+q}, v{RB+40*k+q}\n'
    t+='s_waitcnt vmcnt(0)\n'
    G=SB+20
    for q in range(20):
        t+=f'v_mul_f32 v{RB+q}, 0xbfb8aa3b, v{G+q}\n'
    for q in range(20): t+=f'v_exp_f32 v{RB+q}, v{RB+q}\n'
    for q in range(20): t+=f'v_add_f32 v{RB+q}, 1.0, v{RB+q}\n'
    for q in range(20): t+=f'v_rcp_f32 v{RB+q}, v{RB+q}\n'
    for q in range(20): t+=f'v_mul_f32 v{G+q}, v{G+q}, v{RB+q}\n'
    for cb in range(5):
        x0=XR+2*cb
        for r in range(4):
            src=x0+r//2
            if r%2==0: t+=f'v_lshlrev_b32 v{RB+cb*4+r}, 16, v{src}\n'
            else: t+=f'v_and_b32 v{RB+cb*4+r}, 0xffff0000, v{src}\n'
            t+=f'v_fmac_f32 v{RB+cb*4+r}, v{SB+cb*4+r}, v{G+cb*4+r}\n'
        t+=f'v_cvt_pk_bf16_f32 v{x0}, v{RB+cb*4}, v{RB+cb*4+1}\nv_cvt_pk_bf16_f32 v{x0+1}, v{RB+cb*4+2}, v{RB+cb*4+3}\n'
        t+=f'buffer_store_dwordx2 v[{x0}:{x0+1}], v6, s[28:31], 0 offen offset:{32*cb}\n'
    t+=stamp(7)+stamp_out(10,1)+'K3_END:\ns_endpgm\n'
    assert XR+10<=256 and RB+120<=256
    return finish(t,'k3')
```

```python
from asmlib import *
from k0k3 import stamp, stamp_out, srd, finish, XN_OFF, WT_OFF, ACT_OFF, WS_SIZE, TBS
import re
KA=8; VA=12; KD=20; VD=24; ONES=28
S=[32,64]; NEG=96; P=[112,128]; Q=160
WA=224; W1A=228; WQD=232; W1D=233; XD=236; AD=240; MO=244
LA=128; KF=144; VF=176
FLAG=131072
def mf(d,a,b,c): return f'v_mfma_f32_16x16x32_bf16 {d}, {a}, {b}, {c}'
def vr(b,n): return f'v[{b}:{b+n-1}]'
def ar(b,n): return f'a[{b}:{b+n-1}]'
def oacc(db,qb): return (db*4+qb)*4

def setup():
    t='''
s_load_dwordx2 s[40:41], s[0:1], 8
s_load_dwordx2 s[42:43], s[0:1], 16
s_load_dwordx2 s[44:45], s[0:1], 24
s_load_dwordx2 s[46:47], s[0:1], 48
s_load_dwordx2 s[48:49], s[0:1], 80
v_lshrrev_b32 v1, 6, v0
v_and_b32 v0, 63, v0
s_nop 0
v_readfirstlane_b32 s3, v1
s_cmp_ge_u32 s2, 256
s_cbranch_scc1 KA_END
s_and_b32 s4, s2, 7
s_lshr_b32 s5, s2, 3
s_and_b32 s6, s5, 3
s_lshl_b32 s4, s4, 2
s_add_u32 s4, s4, s6
s_lshr_b32 s5, s5, 2
s_waitcnt lgkmcnt(0)
s_lshl_b32 s6, s4, 19
s_add_u32 s8, s40, s6
s_addc_u32 s9, s41, 0
s_mov_b32 s10, 0x80000
s_mov_b32 s11, 0x00020000
s_add_u32 s12, s42, s6
s_addc_u32 s13, s43, 0
s_mov_b32 s14, 0x80000
s_mov_b32 s15, 0x00020000
s_lshl_b32 s6, s4, 8
s_add_u32 s20, s44, s6
s_addc_u32 s21, s45, 0
s_sub_u32 s22, 0x500000, s6
s_mov_b32 s23, 0x00020000
s_lshl_b32 s6, s4, 7
s_add_u32 s24, s46, s6
s_addc_u32 s25, s47, 0
s_sub_u32 s26, 0x21c000, s6
s_mov_b32 s27, 0x00020000
'''
    t+=srd(16,48,XN_OFF,2621440)+srd(28,48,ACT_OFF,128*TBS)
    t+=f'''s_lshl_b32 s52, s5, 4
s_lshl_b32 s51, s3, 2
s_add_u32 s52, s52, s51
s_mul_i32 s50, s52, 20480
s_mul_i32 s52, s52, {TBS}
s_lshl_b32 s53, s3, 12
s_lshl_b32 s54, s3, 11
v_and_b32 v1, 15, v0
v_lshrrev_b32 v2, 4, v0
v_lshrrev_b32 v4, 2, v1
v_and_b32 v5, 3, v0
'''
    t+='s_lshl_b32 s6, s3, 4\nv_add_u32 v27, s6, v2\n'
    t+=f'''v_lshlrev_b32 v7, 2, v2
v_xor_b32 v7, v7, v1
v_lshlrev_b32 v7, 4, v7
v_lshl_add_u32 v{WQD}, v27, 13, v7
v_lshrrev_b32 v6, 3, v0
v_add_u32 v3, s6, v6
s_movk_i32 s7, 3456
v_mul_lo_u32 v3, v3, s7
v_bfe_u32 v6, v0, 4, 1
v_and_b32 v7, 7, v0
v_lshlrev_b32 v6, 1, v6
v_xor_b32 v7, v6, v7
v_lshl_add_u32 v{W1D}, v7, 4, v3
v_xor_b32 v7, 4, v7
v_lshl_add_u32 v{W1D+1}, v7, 4, v3
v_lshlrev_b32 v{XD}, 4, v0
v_add_u32 v{XD+1}, 20480, v{XD}
v_add_u32 v{XD+2}, 40960, v{XD}
v_add_u32 v{XD+3}, 61440, v{XD}
v_lshlrev_b32 v{AD}, 4, v0
'''
    return t
def setup2():
    t=''
    for n in range(4):
        t+=f'v_or_b32 v7, {4*n}, v2\nv_xor_b32 v7, v7, v1\nv_lshlrev_b32 v7, 4, v7\nv_lshl_add_u32 v{KD+n}, v27, 8, v7\n'
    for n in range(2):
        t+=f'v_or_b32 v7, {4*n}, v2\nv_lshlrev_b32 v7, 1, v7\nv_xor_b32 v7, v7, v1\nv_lshlrev_b32 v7, 4, v7\nv_lshl_add_u32 v{VD+n}, v27, 8, v7\n'
    for ds in range(4):
        t+=f'v_or_b32 v7, {4*ds}, v2\nv_xor_b32 v7, v7, v1\nv_lshlrev_b32 v7, 4, v7\nv_lshl_add_u32 v{KA+ds}, v1, 8, v7\n'
    t+='''v_lshl_add_u32 v3, v2, 2, v4
v_and_b32 v6, 7, v3
v_lshlrev_b32 v3, 8, v3
v_lshl_add_u32 v3, v5, 3, v3
v_add_u32 v3, 0x10000, v3
'''
    for db in range(8): t+=f'v_xor_b32 v7, {db}, v6\nv_lshl_add_u32 v{VA+db}, v7, 5, v3\n'
    t+='''v_lshl_add_u32 v3, v2, 3, v4
v_lshlrev_b32 v6, 8, v3
v_lshl_add_u32 v6, v5, 4, v6
v_add_u32 v6, 0x10000, v6
'''
    for ds in range(4): t+=f'v_xor_b32 v7, {ds}, v4\nv_lshl_add_u32 v{WA+ds}, v7, 6, v6\n'
    t+='''v_bfe_u32 v6, v3, 1, 1
v_bfe_u32 v7, v3, 3, 1
v_lshl_or_b32 v6, v7, 1, v6
v_lshlrev_b32 v3, 7, v3
v_lshl_add_u32 v3, v5, 3, v3
'''
    for fb in range(4): t+=f'v_xor_b32 v7, {fb}, v6\nv_lshl_add_u32 v{W1A+fb}, v7, 5, v3\n'
    for k in range(4): t+=f'v_mov_b32 v{ONES+k}, 0x3f803f80\n'
    return t

def wdma(c):
    sl=c%4; g=[]
    for n in range(4):
        g.append(f's_add_u32 m0, s53, {65536+sl*16384+n*1024}\ns_mov_b32 s55, {(64*c+4*n)*8192}\nbuffer_load_dwordx4 v{WQD}, s[20:23], s55 offen lds ; tag=W{c}')
    for n in range(2):
        g.append(f's_add_u32 m0, s54, {sl*16384+n*1024}\ns_mov_b32 s55, {(64*c+8*n)*3456}\nbuffer_load_dwordx4 v{W1D+n}, s[24:27], s55 offen lds ; tag=W{c}')
    return g
XB=[0,32,64]
def xload(c):
    b=XB[c%3]; g=[]
    for ks in range(2):
        for qb in range(4):
            r=b+(ks*4+qb)*4
            pre=f's_add_u32 s56, s50, {2048*c}\n' if (ks==0 and qb==0) else ''
            g.append(pre+f'buffer_load_dwordx4 {ar(r,4)}, v{XD+qb}, s[16:19], s56 offen offset:{1024*ks} ; tag=X{c}')
    return g
def kvdma(kind,slot,sreg,tag=''):
    g=[]
    base=(0 if kind=='K' else 65536)+slot*16384
    sr='s[8:11]' if kind=='K' else 's[12:15]'
    for n in range(4):
        v=KD+n if kind=='K' else VD+(n&1)
        pre=f's_add_u32 m0, s53, {base}\ns_nop 0\n' if n==0 else ''
        g.append(pre+f'buffer_load_dwordx4 v{v}, {sr}, {sreg} offen offset:{1024*n} lds'+(f' ; tag={tag}' if tag else ''))
    return g

QA=32
def hacc(fb,qb): return (96 if fb<2 else 224-32)+(fb*4+qb)*4
STF=['']
def proj():
    NC=10
    t=''
    for g in wdma(0): t+=g+'\n'
    t+='\n'.join(xload(0))+'\n'
    for g in wdma(1): t+=g+'\n'
    t+='\n'.join(xload(1))+'\n'
    for g in wdma(2): t+=g+'\n'
    t+=setup2()
    AF=128
    def afrag(c,ks,j,buf):
        sl=c%4; r=AF+(buf*12+j)*4
        if j<8: ad=WA+j//2; o=sl*16384+32*ks*256+8*(j%2); st=1024
        else: ad=W1A+j-8; o=sl*16384+32*ks*128; st=512
        return [f'ds_read_b64_tr_b16 {ar(r,2)}, v{ad} offset:{o}', f'ds_read_b64_tr_b16 {ar(r+2,2)}, v{ad} offset:{o+st}']
    t+='@NEED W0,X0\ns_barrier\n'+stamp(5)
    for j in range(12): t+='\n'.join(afrag(0,0,j,0))+'\n'
    pend=[]
    def kv0():
        r=[]
        for kind,tile in (('K',0),('V',0)):
            g=kvdma(kind,tile,'s55',f'{kind}{tile}'); g[0]=f's_mov_b32 s55, {tile*16384}\n'+g[0]; r+=g
        return r
    for c in range(NC):
        for ks in range(2):
            step=c*2+ks; buf=ks
            nxt=[]
            if ks==0:
                if c==5: t+=stamp(6)
                if c>0: t+=f'@NEED X{c}\n'
                for j in range(12): nxt+=afrag(c,1,j,1)
            else:
                t+='\n'.join(pend)+'\n'; pend=[]
                if c+1<NC:
                    t+=f'@NEED W{c+1}\ns_barrier\n'
                    for j in range(12): nxt+=afrag(c+1,0,j,0)
                else:
                    t+='s_waitcnt lgkmcnt(0)\ns_barrier\n'
                    pend+=kv0()
                if c+2<NC: pend+=xload(c+2)
                if c+3<NC: pend+=wdma(c+3)
            k=0
            for j in range(12):
                for qb in range(4):
                    a=ar(AF+(buf*12+j)*4,4); b=ar(XB[c%3]+(ks*4+qb)*4,4)
                    if j<8: d=vr(QA+(j*4+qb)*4,4)
                    else: d=ar(hacc(j-8,qb),4)
                    t+=mf(d,a,b,'0' if step==0 else d)+'\n'
                    if nxt and k%2==0: t+=nxt.pop(0)+'\n'
                    elif pend and (k%SPR==1): t+=pend.pop(0)+'\n'
                    k+=1
            t+='\n'.join(nxt)+'\n'
    t+='\n'.join(pend)+'\n'
    return t
SPR=6
VQ=[]
NS=[None]

def proj_epi():
    t='s_mov_b32 s57, %d\ns_mov_b32 s58, %d\n'%(4*16384,3*16384)
    t+='s_mov_b32 s60, 0x3e0293ee\ns_mov_b32 s61, 0x3e0293ee\ns_mov_b32 s62, 0xbfb8aa3b\ns_mov_b32 s63, 0xbfb8aa3b\n'
    t+=f's_mov_b32 s36, s28\ns_mov_b32 s37, s29\ns_mov_b32 s39, 0x00020000\ns_cmp_ge_u32 s4, 27\ns_cselect_b32 s38, 0, s30\n'
    t+=f's_lshl_b32 s51, s4, 11\ns_add_u32 s51, s51, {128*1024}\ns_add_u32 s51, s51, s52\ns_nop 3\n'
    dm=[]
    for kind,tile in (('K',1),('V',1),('K',2),('V',2),('K',3)):
        g=kvdma(kind,tile,'s55',f'{kind}{tile}'); g[0]=f's_mov_b32 s55, {tile*16384}\n'+g[0]; dm+=g
    body=[]
    for qb in range(4):
        for ds in range(4):
            a0=QA+((2*ds)*4+qb)*4; a1=QA+((2*ds+1)*4+qb)*4; dst=Q+(qb*4+ds)*4
            for a in (a0,a0+2,a1,a1+2): body.append(f'v_pk_mul_f32 v[{a}:{a+1}], v[{a}:{a+1}], s[60:61]')
            for k,a in enumerate((a0,a0+2,a1,a1+2)): body.append(f'v_cvt_pk_bf16_f32 v{dst+k}, v{a}, v{a+1}')
    for qb in range(4):
        X=32+(qb%2)*48; T=X+16; D=X+32
        src=[hacc(fb,qb)+r for fb in range(4) for r in range(4)]
        for r in range(16): body.append(f'v_accvgpr_read_b32 v{X+r}, a{src[r]}')
        for r in range(0,16,2): body.append(f'v_pk_mul_f32 v[{T+r}:{T+r+1}], v[{X+r}:{X+r+1}], s[62:63]')
        for r in range(16): body.append(f'v_exp_f32 v{T+r}, v{T+r}')
        for r in range(0,16,2): body.append(f'v_pk_add_f32 v[{T+r}:{T+r+1}], v[{T+r}:{T+r+1}], 1.0 op_sel_hi:[1,0]')
        for r in range(16): body.append(f'v_rcp_f32 v{T+r}, v{T+r}')
        for r in range(0,16,2): body.append(f'v_pk_mul_f32 v[{T+r}:{T+r+1}], v[{T+r}:{T+r+1}], v[{X+r}:{X+r+1}]')
        for k in range(8): body.append(f'v_cvt_pk_bf16_f32 v{D+k}, v{T+2*k}, v{T+2*k+1}')
        for s_ in range(2):
            body.append(f'buffer_store_dwordx4 {vr(D+4*s_,4)}, v{AD}, s[36:39], s51 offen offset:{1024*s_}{STF[0]} ; tag=H')
        body.append(f's_add_u32 s51, s51, {TBS}')
    step=len(body)//21
    for k,x in enumerate(body):
        t+=x+'\n'
        if dm and k%step==step-1: t+=dm.pop(0)+'\n'
    assert not dm
    return t

def kread(slot,un,f):
    kbk,ds=f//4,f%4
    return f'ds_read_b128 {ar(KF+4*f,4)}, v{KA+ds} offset:{slot*16384+un*8192+kbk*4096}'
def vread(slot,un,db):
    f=VF+db*4; o=slot*16384+un*8192
    return [f'ds_read_b64_tr_b16 {ar(f,2)}, v{VA+db} offset:{o}', f'ds_read_b64_tr_b16 {ar(f+2,2)}, v{VA+db} offset:{o+4096}']
def sblk(sb,kbk,qb): return S[sb]+(kbk*4+qb)*4
def qk_mfmas(sb,cinit):
    r=[]
    for kbk in range(2):
        for ds in range(4):
            for qb in range(4):
                d=vr(sblk(sb,kbk,qb),4)
                c=d if ds>0 else (vr(NEG+4*qb,4) if cinit else '0')
                r.append(mf(d,ar(KF+4*(kbk*4+ds),4),vr(Q+(qb*4+ds)*4,4),c))
    return r
def pv_mfmas(pb,first=False):
    r=[]
    for db in range(8):
        for qb in range(4):
            d=ar(oacc(db,qb),4)
            r.append(mf(d,ar(VF+db*4,4),vr(P[pb]+qb*4,4),'0' if first else d))
    for qb in range(4):
        d=ar(LA+4*qb,4)
        r.append(mf(d,vr(ONES,4),vr(P[pb]+qb*4,4),'0' if first else d))
    return r
def sm_ops(sb,pb):
    r=[]
    for kbk in range(2):
        for qb in range(4):
            for e in range(4):
                s=sblk(sb,kbk,qb)+e
                cv=None
                if e%2==1: cv=f'v_cvt_pk_bf16_f32 v{P[pb]+qb*4+kbk*2+e//2}, v{s-1}, v{s}'
                r.append((f'v_exp_f32 v{s}, v{s}',cv))
    return r
def touches(x,base,n):
    return any(base<=int(a)<base+n for a in re.findall(r'v(\d+)',x))

US=68
def unit(un, j4, first=False, last=False, dma=True, pre=False):
    sb=1-un
    m=qk_mfmas(sb,True)+pv_mfmas(un,first)
    gaps=[[] for _ in range(US)]
    mine=sm_ops(sb,sb); prev=sm_ops(un,un)
    noqk = last and un==1
    def put(ops,i,s):
        ex,cv=ops[i]
        gaps[s%US].append(ex)
        if cv: gaps[(s+3)%US if False else (s+1)%US].append(cv)
    for i in range(24,32): put(prev,i,20+2*i)
    if not noqk:
        for i in range(0,24): put(mine,i,20+2*i)
    v=[]
    for db in range(8): v+=vread(j4,un,db)
    for i,x in enumerate(v): gaps[2*i+1].append(x)
    if not last:
        for f in range(8): gaps[35+4*f].append(kread((j4+1)%4,un,f))
    if dma:
        if un==0 and dma!='V':
            kd=kvdma('K',j4,'s57')
            for n in range(4): gaps[37+8*n].append(kd[n])
            gaps[65].append('s_add_u32 s57, s57, 16384')
        if un==1:
            vd=kvdma('V',(j4+3)%4,'s58')
            for n in range(4): gaps[37+8*n].append(vd[n])
            gaps[65].append('s_add_u32 s58, s58, 16384')
    def key(x):
        if x.startswith('v_'): return 2
        return 0 if x.startswith('s_') and 'buffer' not in x else 1
    gaps=[sorted(g,key=key) for g in gaps]
    t=''
    if pre:
        for g in range(16,US):
            for x in gaps[g]:
                if x.startswith('v_') or x.startswith('ds_read_b128'): t+=x+'\n'
        return t
    for g in range(US):
        if not(noqk and g<32): t+=m[g]+'\n'
        for x in gaps[g]: t+=x+'\n'
    return t

def gmax(v,tmp):
    return (f'v_mov_b32 v{tmp}, v{v}\ns_nop 1\nv_permlane32_swap_b32 v{v}, v{tmp}\nv_max_f32 v{v}, v{v}, v{tmp}\n'
            f'v_mov_b32 v{tmp}, v{v}\ns_nop 1\nv_permlane16_swap_b32 v{v}, v{tmp}\nv_max_f32 v{v}, v{v}, v{tmp}\n')
def rowmax(sb):
    t=''
    for qb in range(4):
        a=sblk(sb,0,qb); b=sblk(sb,1,qb); m=1+qb
        t+=f'v_max3_f32 v{m}, v{a}, v{a+1}, v{a+2}\nv_max3_f32 v{m}, v{m}, v{a+3}, v{b}\nv_max3_f32 v{m}, v{m}, v{b+1}, v{b+2}\nv_max_f32 v{m}, v{m}, v{b+3}\n'
        t+=gmax(m,5)
    return t

def fallback():
    t='KA_FALL:\ns_waitcnt vmcnt(0)\nv_and_b32 v1, 15, v0\nv_lshrrev_b32 v2, 4, v0\nv_lshrrev_b32 v4, 2, v1\nv_and_b32 v5, 3, v0\ns_lshl_b32 s6, s3, 4\nv_add_u32 v27, s6, v2\n'+setup2()
    for r in range(144): t+=f'v_accvgpr_write_b32 a{r}, 0\n'
    for qb in range(4): t+=f'v_mov_b32 v{MO+qb}, 0xff7fffff\n'
    t+='s_mov_b32 s57, 0\ns_mov_b32 s59, 32\nKA_FLOOP:\ns_barrier\n'
    for g in kvdma('K',0,'s57'): t+=g+'\n'
    for g in kvdma('V',0,'s57'): t+=g+'\n'
    t+='s_waitcnt vmcnt(0)\ns_barrier\n'
    for un in range(2):
        for f in range(8): t+=kread(0,un,f)+'\n'
        t+='\n'.join(qk_mfmas(0,False))+'\n'
        t+=rowmax(0)
        for qb in range(4):
            t+=f'v_max_f32 v{1+qb}, v{1+qb}, v{MO+qb}\nv_sub_f32 v{8+0}, v{MO+qb}, v{1+qb}\n'.replace(f'v{8+0}','v6')
            t+=f'v_exp_f32 v6, v6\nv_mov_b32 v{MO+qb}, v{1+qb}\n'
            for a in [oacc(db,qb) for db in range(8)]+[LA+4*qb]:
                for r in range(4): t+=f'v_accvgpr_read_b32 v{64+r}, a{a+r}\n'
                for r in range(4): t+=f'v_mul_f32 v{64+r}, v6, v{64+r}\n'
                for r in range(4): t+=f'v_accvgpr_write_b32 a{a+r}, v{64+r}\n'
            for kbk in range(2):
                for r in range(4):
                    s=sblk(0,kbk,qb)+r
                    t+=f'v_sub_f32 v{s}, v{s}, v{1+qb}\n'
        for ex,cv in sm_ops(0,0):
            t+=ex+'\n'
            if cv: t+=cv+'\n'
        for db in range(8): t+='\n'.join(vread(0,un,db))+'\n'
        t+='\n'.join(pv_mfmas(0))+'\n'
    t+='s_add_u32 s57, s57, 16384\ns_sub_u32 s59, s59, 1\ns_cmp_lg_u32 s59, 0\ns_cbranch_scc1 KA_FLOOP\n'
    t+='s_nop 7\n'+NS[0](False)+'s_endpgm\n'
    return t

def build(thr=0x71800000,stf=' sc1',spr=6):
    global SPR
    STF[0]=stf; SPR=spr
    t=setup()+stamp(0)+proj()+stamp(1)+proj_epi()+stamp(2)
    t,vq=auto_vm(t)
    k0=max(i for i,x in enumerate(vq) if x=='K0');
    t+=f's_waitcnt vmcnt({len(vq)-k0-1})\ns_barrier\n'
    VQ[:]=vq[k0+1:]
    for f in range(8): t+=kread(0,0,f)+'\n'
    t+='\n'.join(qk_mfmas(0,False))+'\n'
    t+=rowmax(0)
    for qb in range(4):
        for r in range(4): t+=f'v_sub_f32 v{NEG+4*qb+r}, 0, v{1+qb}\n'
        for kbk in range(2):
            for r in range(4):
                s=sblk(0,kbk,qb)+r
                t+=f'v_sub_f32 v{s}, v{s}, v{1+qb}\n'
    t+=unit(1,3,pre=True)
    t+='s_waitcnt lgkmcnt(0)\n'
    t+=stamp(3)
    head=finish(t,'ka_head')
    def sup(first=False,last=False):
        s=''
        for j4 in range(4):
            if first:
                need={0:('V0','K1'),1:('V1','K2'),2:('V2','K3')}.get(j4)
                if need:
                    idx=max(i for i,x in enumerate(VQ) if x in need); w=min(63,len(VQ)-idx-1+8*j4)
                else: w=16
            elif last: w=[16,12,4,0][j4]
            else: w=16
            s+=f's_waitcnt vmcnt({w}) lgkmcnt(2)\ns_barrier\n'
            d=True if not last else ('V' if j4==0 else False)
            s+=unit(0,j4,first=(first and j4==0),last=(last and j4==3),dma=d)
            s+=unit(1,j4,last=(last and j4==3),dma=d)
        return s
    def sched(txt,entry):
        return auto_lgkm(parse(txt),entry)
    b0,q0=sched(sup(first=True),[])
    _,q1=sched(sup(),q0); b1,q1=sched(sup(),q1); b1b,q1b=sched(sup(),q1)
    assert [a for a,b in q0]==[a for a,b in q1][len(q1)-len(q0):],(q0,q1)
    assert text(b1)==text(b1b) and q1==q1b, (q1,q1b)
    b2,q2=sched(sup(last=True),q1)
    _,nh=hazards(b0+b1+b1,fix=False,name='loop')
    assert nh==0, nh
    b2,_=hazards(b2,fix=True)
    t=text(b0)+'s_mov_b32 s59, 6\nKA_LOOP:\n'+text(b1)+'s_sub_u32 s59, s59, 1\ns_cmp_lg_u32 s59, 0\ns_cbranch_scc1 KA_LOOP\n'+text(b2)
    def norm_store(check):
        e=''
        for qb in range(4): e+=f'v_accvgpr_read_b32 v{4+qb}, a{LA+4*qb}\n'
        if check:
            e+='v_max3_f32 v2, v4, v5, v6\nv_max_f32 v2, v2, v7\nv_add_f32 v3, v4, v5\nv_add_f32 v3, v3, v6\nv_add_f32 v3, v3, v7\nv_fmac_f32 v2, 0, v3\nv_mov_b32 v3, 0\n'
        for qb in range(4): e+=f'v_rcp_f32 v{4+qb}, v{4+qb}\n'
        e+=f's_lshl_b32 s55, s4, 12\ns_add_u32 s55, s55, s52\n'
        k=0
        for qb in range(4):
            for s in range(4):
                T=32+8*(k%4); D=8+4*(k%4); k+=1
                for r in range(4): e+=f'v_accvgpr_read_b32 v{T+r}, a{oacc(2*s,qb)+r}\n'
                for r in range(4): e+=f'v_accvgpr_read_b32 v{T+4+r}, a{oacc(2*s+1,qb)+r}\n'
                sel='op_sel:[0,%d] op_sel_hi:[1,%d]'%(qb%2,qb%2); rp=4+2*(qb//2)
                if check:
                    for bb in range(T,T+8,2): e+=f'v_pk_fma_f32 v[2:3], v[{bb}:{bb+1}], 0, v[2:3] op_sel_hi:[1,0,1]\n'
                for bb in range(T,T+8,2): e+=f'v_pk_mul_f32 v[{bb}:{bb+1}], v[{bb}:{bb+1}], v[{rp}:{rp+1}] {sel}\n'
                for x in range(4): e+=f'v_cvt_pk_bf16_f32 v{D+x}, v{T+2*x}, v{T+2*x+1}\n'
                e+=f'buffer_store_dwordx4 {vr(D,4)}, v{AD}, s[28:31], s55 offen offset:{1024*s}{STF[0]}\n'
            e+=f's_add_u32 s55, s55, {TBS}\n'
        return e
    NS[0]=norm_store
    e='s_waitcnt lgkmcnt(0)\ns_nop 7\n'+stamp(4)+norm_store(True)
    e+='v_add_f32 v2, v2, v3\n'
    e+=f's_mov_b32 s55, {hex(thr)}\nv_cmp_ngt_f32 vcc, s55, v2\n'
    e+=f's_cmp_lg_u64 vcc, 0\ns_cselect_b32 s55, 1, 0\ns_lshl_b32 s56, s3, 2\ns_add_u32 s56, s56, {FLAG}\nv_mov_b32 v2, s55\nv_mov_b32 v3, s56\nds_write_b32 v3, v2\ns_waitcnt lgkmcnt(0)\ns_barrier\nv_mov_b32 v3, {FLAG}\nds_read_b128 v[4:7], v3\nv_or_b32 v4, v4, v5\nv_or3_b32 v4, v4, v6, v7\ns_nop 0\nv_readfirstlane_b32 s55, v4\ns_nop 3\ns_cmp_lg_u32 s55, 0\ns_cbranch_scc1 KA_FALL\n'
    e+=stamp(7)+stamp_out(48,0)+'KA_END:\ns_endpgm\n'
    return head+t+finish(e,'ka_epi')+finish(fallback(),'ka_fall')
```
